```python
import torch

def _softmax(x, axis=-1):
    return torch.softmax(x, dim=axis)
def _gelu(x):
    return torch.nn.functional.gelu(x, approximate="tanh")
def _silu(x):
    return torch.nn.functional.silu(x)
def _sigmoid(x):
    return torch.sigmoid(x)
def _layernorm(x, axis=-1, eps=1e-5):
    m = x.mean(dim=axis, keepdim=True)
    v = x.var(dim=axis, keepdim=True, unbiased=False)
    return (x - m) / torch.sqrt(v + eps)
def _scatter_add(tgt, idx, src, axis=0):
    return tgt.clone().index_add_(axis, idx, src)
def _segment_sum(src, seg, n):
    out = torch.zeros((n,) + src.shape[1:], dtype=src.dtype)
    return out.index_add_(0, seg, src)
def _pad(x, pw):
    flat = tuple(v for pair in reversed(pw) for v in pair)
    return torch.nn.functional.pad(x, flat)

kernel_name = 'sequential_preLN__sliding_local_dilated__mixer_s_mlp__prompt'

def setup_inputs():

    _w = (lambda a: (lambda t: t.to(torch.bfloat16) if t.is_floating_point() else t)(torch.as_tensor(a)))
    def _A_setup():
        B, S, D = 1, 2048, 512
        return {
            "x": _w((lambda *s: torch.randn(*s, dtype=torch.bfloat16) * 0.05)(B, S, D)),
            "wqkv": _w((lambda *s: torch.randn(*s, dtype=torch.bfloat16) * 0.05)(D, 3 * D)),
            "wo": _w((lambda *s: torch.randn(*s, dtype=torch.bfloat16) * 0.05)(D, D)),
        }
    _A_in = _A_setup()

    def _B_setup():
        B, S, D, F = 1, 2048, 512, 1792
        return {
            "x":  _w((lambda *s: torch.randn(*s, dtype=torch.bfloat16) * 0.05)(B, S, D)),
            "w1": _w((lambda *s: torch.randn(*s, dtype=torch.bfloat16) * 3.2)(D, D) * (D ** -0.5)),
            "w2": _w((lambda *s: torch.randn(*s, dtype=torch.bfloat16) * 3.2)(D, D) * (D ** -0.5)),
            "w3": _w((lambda *s: torch.randn(*s, dtype=torch.bfloat16) * 3.2)(D, F) * (D ** -0.5)),
            "w4": _w((lambda *s: torch.randn(*s, dtype=torch.bfloat16) * 3.2)(F, D) * (F ** -0.5)),
        }
    _B_in = _B_setup()

    return {
        "A_x": _A_in["x"],
        "A_wqkv": _A_in["wqkv"],
        "A_wo": _A_in["wo"],
        "B_x": _B_in["x"],
        "B_w1": _B_in["w1"],
        "B_w2": _B_in["w2"],
        "B_w3": _B_in["w3"],
        "B_w4": _B_in["w4"],
    }

def reference(A_x, A_wqkv, A_wo, B_x, B_w1, B_w2, B_w3, B_w4):
    def _A_ref(x, wqkv, wo):
        B, S, D = x.shape
        H = 32; Dh = D // H
        W, dil = 8, 2
        qkv = (lambda x, *d: x.permute(*d))((x @ wqkv).reshape(B, S, 3, H, Dh), 2, 0, 3, 1, 4)
        q, k, v = qkv[0], qkv[1], qkv[2]
        scale = Dh ** -0.5
        pos = torch.arange(S)
        off = torch.arange(W) * dil
        idx = pos[:, None] - off[None, :]
        mask = idx >= 0
        idx_c = torch.where(mask, idx, 0).reshape(-1)
        kg = k[:, :, idx_c, :].reshape(B, H, S, W, Dh)
        vg = v[:, :, idx_c, :].reshape(B, H, S, W, Dh)
        logits = torch.einsum("bhsd,bhswd->bhsw", q, kg) * scale
        logits = torch.where(mask[None, None, :, :], logits, -1e9)
        attn = _softmax(logits, axis=-1)
        o = torch.einsum("bhsw,bhswd->bhsd", attn, vg)
        return (lambda x, *d: x.permute(*d))(o, 0, 2, 1, 3).reshape(B, S, D) @ wo

    def _B_ref(x, w1, w2, w3, w4):
        B, S, D = x.shape
        h = _gelu(_layernorm(x, axis=-1) @ w1)
        c = D // 4
        g0 = _pad(h[:, :, 0*c:1*c], ((0, 0), (1, 0), (0, 0)))[:, :S, :]
        g1 = _pad(h[:, :, 1*c:2*c], ((0, 0), (0, 1), (0, 0)))[:, 1:, :]
        g2 = _pad(h[:, :, 2*c:3*c], ((0, 0), (2, 0), (0, 0)))[:, :S, :]
        g3 = _pad(h[:, :, 3*c:   ], ((0, 0), (0, 2), (0, 0)))[:, 2:, :]
        hs = torch.concatenate([g0, g1, g2, g3], axis=-1) @ w2
        x1 = x + hs
        h2 = _gelu(_layernorm(x1, axis=-1) @ w3) @ w4
        return x1 + h2

    x = A_x
    h = x + _A_ref(_layernorm(x, axis=-1), A_wqkv, A_wo)
    h2 = h + _B_ref(_layernorm(h, axis=-1), B_w1, B_w2, B_w3, B_w4)
    return h2
```

```python
import struct


def f2u(x):
    return struct.unpack("<I", struct.pack("<f", x))[0]


def vr(b, n=1):
    return "v%d" % b if n == 1 else "v[%d:%d]" % (b, b + n - 1)


def ar(b, n=1):
    return "a%d" % b if n == 1 else "a[%d:%d]" % (b, b + n - 1)


def sr(b, n=1):
    return "s%d" % b if n == 1 else "s[%d:%d]" % (b, b + n - 1)


class Kern:
    def __init__(self, name, nwg, lds, nthreads=256):
        self.name = name
        self.nwg = nwg
        self.lds = lds
        self.nthreads = nthreads
        self.lines = []
        self.vmq = []
        self.lgq = []
        self.vnext = 1
        self.anext = 0
        self.snext = 3
        self.vmax = 1
        self.uid = 0

    def __call__(self, s):
        self.lines.append("    " + s)

    def label(self, base):
        self.uid += 1
        return "L_%s_%s_%d" % (self.name, base, self.uid)

    def place(self, lab):
        self.lines.append(lab + ":")

    def c(self, s):
        self.lines.append("    ; " + s)

    def v(self, n=1, align=None):
        align = align or (2 if n >= 2 else 1)
        self.vnext = (self.vnext + align - 1) // align * align
        b = self.vnext
        self.vnext += n
        self.vmax = max(self.vmax, self.vnext)
        assert self.vnext <= 256, "out of vgprs in " + self.name
        return b

    def a(self, n=1, align=None):
        align = align or (2 if n >= 2 else 1)
        self.anext = (self.anext + align - 1) // align * align
        b = self.anext
        self.anext += n
        assert self.anext <= 256
        return b

    def s(self, n=1, align=None):
        align = align or (4 if n >= 4 else (2 if n == 2 else 1))
        self.snext = (self.snext + align - 1) // align * align
        b = self.snext
        self.snext += n
        assert self.snext <= 100, "out of sgprs"
        return b

    def vm(self, s, tag, counted=True):
        self(s)
        if counted:
            self.vmq.append(tag)

    def wait_vm(self, tag):
        idx = max(i for i, t in enumerate(self.vmq) if t == tag)
        n = len(self.vmq) - 1 - idx
        self("s_waitcnt vmcnt(%d)" % min(n, 63))

    def lg(self, s, tag):
        self(s)
        self.lgq.append(tag)

    def wait_lg(self, tag=None):
        if tag is None:
            self("s_waitcnt lgkmcnt(0)")
            self.lgq = []
            return
        idx = max(i for i, t in enumerate(self.lgq) if t == tag)
        n = len(self.lgq) - 1 - idx
        self("s_waitcnt lgkmcnt(%d)" % min(n, 15))

    def srd(self, lo, hi, size, off=0):
        d = self.s(4)
        if off:
            self("s_add_u32 %s, %s, 0x%x" % (sr(d), sr(lo), off))
            self("s_addc_u32 %s, %s, 0" % (sr(d + 1), sr(hi)))
        else:
            self("s_mov_b32 %s, %s" % (sr(d), sr(lo)))
            self("s_mov_b32 %s, %s" % (sr(d + 1), sr(hi)))
        self("s_mov_b32 %s, 0x%x" % (sr(d + 2), size))
        self("s_mov_b32 %s, 0x20000" % sr(d + 3))
        return d

    def text(self):
        out = [".globl %s" % self.name, ".p2align 8", ".type %s,@function" % self.name, "%s:" % self.name]
        out += self.lines
        return "\n".join(out) + "\n"

    def descriptor(self):
        nv = self.vmax
        if self.anext:
            acc = (nv + 3) // 4 * 4
            tot = acc + self.anext
        else:
            acc = (nv + 3) // 4 * 4
            tot = nv
        return "\n".join([
            ".p2align 6",
            ".amdhsa_kernel %s" % self.name,
            "  .amdhsa_next_free_vgpr %d" % tot,
            "  .amdhsa_next_free_sgpr %d" % max(self.snext, 16),
            "  .amdhsa_accum_offset %d" % acc,
            "  .amdhsa_group_segment_fixed_size 0",
            "  .amdhsa_kernarg_size 88",
            "  .amdhsa_user_sgpr_count 2",
            "  .amdhsa_user_sgpr_kernarg_segment_ptr 1",
            "  .amdhsa_system_sgpr_workgroup_id_x 1",
            ".end_amdhsa_kernel",
        ]) + "\n"
```

```python
import sys, math
from asmlib import *

NAME = "sequential_preLN__sliding_local_dilated__mixer_s_mlp__prompt"
S, D, F = 2048, 512, 1792
MB = 1 << 20
WS_O, WS_H, WS_H1, WS_X1, WS_G = 0, 2 * MB, 4 * MB, 6 * MB, 8 * MB
WS_STH, WS_STX = 16 * MB, 16 * MB + 256 * 1024
EPS = 1e-5
LOG2E = 1.4426950408889634
GC0 = -2.0 * math.sqrt(2.0 / math.pi) * LOG2E
GC1 = GC0 * 0.044715
ONES = 0x3F803F80
MFMA = "v_mfma_f32_16x16x32_bf16"
A_X, A_WQKV, A_WO, B_X, B_W1, B_W2, B_W3, B_W4, K_OUT, K_DBG, K_WS = range(11)


def prologue(k, exit_lab):
    k("s_cmp_ge_u32 s2, %d" % k.nwg)
    k("s_cbranch_scc1 %s" % exit_lab)
    k("s_load_dwordx16 s[4:19], s[0:1], 0")
    k("s_load_dwordx4 s[20:23], s[0:1], 64")
    k("s_load_dwordx2 s[24:25], s[0:1], 80")
    k.snext = 26


def ptr(idx):
    return 4 + 2 * idx


def lane_regs(k):
    r = {}
    r["lane"] = k.v()
    r["cl"] = k.v()
    r["g"] = k.v()
    r["w"] = k.s()
    t = k.v()
    r["t"] = t
    k("v_and_b32 %s, 63, v0" % vr(r["lane"]))
    k("v_lshrrev_b32 %s, 6, v0" % vr(t))
    k("v_and_b32 %s, 15, v0" % vr(r["cl"]))
    k("v_readfirstlane_b32 %s, %s" % (sr(r["w"]), vr(t)))
    k("v_bfe_u32 %s, v0, 4, 2" % vr(r["g"]))
    return r


def stats_finalize(k, st, tmp, two_ln):
    for i in (0, 4, 8, 12):
        k("v_pk_add_f32 %s, %s, %s" % (vr(st + i, 2), vr(st + i, 2), vr(st + i + 2, 2)))
    k("v_pk_add_f32 %s, %s, %s" % (vr(st, 2), vr(st, 2), vr(st + 4, 2)))
    k("v_pk_add_f32 %s, %s, %s" % (vr(st + 8, 2), vr(st + 8, 2), vr(st + 12, 2)))
    k("v_pk_add_f32 %s, %s, %s" % (vr(st, 2), vr(st, 2), vr(st + 8, 2)))
    finalize_sq(k, st, st + 1, st, st + 2, st + 4, st + 6, two_ln)


def finalize_sq(k, s_, q_, nm, r, r1, tmp, two_ln):
    k("v_mul_f32 %s, 0x%x, %s" % (vr(nm), f2u(-1.0 / D), vr(s_)))
    k("v_mul_f32 %s, 0x%x, %s" % (vr(tmp), f2u(1.0 / D), vr(q_)))
    k("v_fma_f32 %s, -%s, %s, %s" % (vr(tmp), vr(nm), vr(nm), vr(tmp)))
    k("v_max_f32 %s, 0, %s" % (vr(tmp), vr(tmp)))
    k("v_add_f32 %s, 0x%x, %s" % (vr(r1), f2u(EPS), vr(tmp)))
    k("v_rsq_f32 %s, %s" % (vr(r1), vr(r1)))
    k("s_nop 0")
    if two_ln:
        k("v_mul_f32 %s, %s, %s" % (vr(tmp), vr(tmp), vr(r1)))
        k("v_fmaak_f32 %s, %s, %s, 0x%x" % (vr(tmp), vr(tmp), vr(r1), f2u(EPS)))
        k("v_rsq_f32 %s, %s" % (vr(tmp), vr(tmp)))
        k("s_nop 0")
        k("v_mul_f32 %s, %s, %s" % (vr(r), vr(r1), vr(tmp)))
    else:
        k("v_mov_b32 %s, %s" % (vr(r), vr(r1)))


def gelu_pairs(k, xs, tmps, sc, sone):
    for x, t in zip(xs, tmps):
        k("v_pk_mul_f32 %s, %s, %s" % (vr(t, 2), vr(x, 2), vr(x, 2)))
    for x, t in zip(xs, tmps):
        k("v_pk_fma_f32 %s, %s, %s, %s op_sel:[0,0,1] op_sel_hi:[1,0,1]" % (vr(t, 2), vr(t, 2), sr(sc, 2), sr(sc, 2)))
    for x, t in zip(xs, tmps):
        k("v_pk_mul_f32 %s, %s, %s" % (vr(t, 2), vr(t, 2), vr(x, 2)))
    for x, t in zip(xs, tmps):
        k("v_exp_f32 %s, %s" % (vr(t), vr(t)))
        k("v_exp_f32 %s, %s" % (vr(t + 1), vr(t + 1)))
    k("s_nop 0")
    for x, t in zip(xs, tmps):
        k("v_pk_add_f32 %s, %s, %s" % (vr(t, 2), vr(t, 2), sr(sone, 2)))
    for x, t in zip(xs, tmps):
        k("v_rcp_f32 %s, %s" % (vr(t), vr(t)))
        k("v_rcp_f32 %s, %s" % (vr(t + 1), vr(t + 1)))
    k("s_nop 0")
    for x, t in zip(xs, tmps):
        k("v_pk_mul_f32 %s, %s, %s" % (vr(x, 2), vr(x, 2), vr(t, 2)))


def row_stats_store(k, pk, npk, L, srd_st, voff_st):
    s_ = k.v(); q_ = k.v(); u2 = k.v(); on = k.v()
    k("v_mov_b32 %s, 0x%x" % (vr(on), ONES))
    k("v_mov_b32 %s, 0" % vr(s_))
    k("v_mov_b32 %s, 0" % vr(q_))
    for i in range(npk):
        k("v_dot2c_f32_bf16 %s, %s, %s" % (vr(s_), vr(pk + i), vr(on)))
        k("v_dot2c_f32_bf16 %s, %s, %s" % (vr(q_), vr(pk + i), vr(pk + i)))
    k("s_nop 2")
    k("v_permlane32_swap_b32 %s, %s" % (vr(s_), vr(q_)))
    k("s_nop 1")
    k("v_add_f32 %s, %s, %s" % (vr(s_), vr(s_), vr(q_)))
    k("v_mov_b32 %s, %s" % (vr(u2), vr(s_)))
    k("s_nop 1")
    k("v_permlane16_swap_b32 %s, %s" % (vr(s_), vr(u2)))
    k("s_nop 1")
    k("v_add_f32 %s, %s, %s" % (vr(s_), vr(s_), vr(u2)))
    k.vm("buffer_store_dword %s, %s, %s, 0 offen" % (vr(s_), vr(voff_st), sr(srd_st, 4)), "st")


def gemm_kernel(name, epi):
    cfg = {
        "wo": dict(W=A_WO, N=512, K=512, TN=64, TMW=1, kmap="nat", act=WS_O, ln=False),
        "w1": dict(W=B_W1, N=512, K=512, TN=64, TMW=1, kmap="P", act=WS_H, ln=True),
        "w2": dict(W=B_W2, N=512, K=512, TN=64, TMW=1, kmap="P", act=WS_H1, ln=False),
        "w3": dict(W=B_W3, N=1792, K=512, TN=128, TMW=2, kmap="P", act=WS_X1, ln=True),
        "w4": dict(W=B_W4, N=512, K=1792, TN=64, TMW=1, kmap="P", act=WS_G, ln=False),
    }[epi]
    N, K, TN, TMW, kmap, ln = cfg["N"], cfg["K"], cfg["TN"], cfg["TMW"], cfg["kmap"], cfg["ln"]
    NT = TN // 16
    KS = K // 32
    rowb = N * 2
    pitch = TN * 2
    CH = 16384 // pitch
    KSC = CH // 32
    NCH = K // CH
    R = min(NCH, 8)
    ncb = N // TN
    TM = 64 * TMW
    nrb = S // TM
    nwg = nrb * ncb
    rbx = nrb // 8
    CSOFF = R * 16384
    lds = CSOFF + (512 if ln else 0)
    k = Kern(name, nwg, lds)
    end = "L_%s_end" % name
    prologue(k, end)
    L = lane_regs(k)
    lane, cl, g, sw, t0 = L["lane"], L["cl"], L["g"], L["w"], L["t"]
    scb = k.s(); srb = k.s(); sT = k.s(); st1 = k.s(); st2 = k.s()
    k("s_and_b32 %s, s2, 7" % sr(st1))
    k("s_lshr_b32 %s, s2, 3" % sr(st2))
    if ncb == 8:
        k("s_and_b32 %s, %s, 7" % (sr(scb), sr(st2)))
        k("s_lshr_b32 %s, %s, 3" % (sr(srb), sr(st2)))
    else:
        assert ncb == 14 and rbx == 2
        k("s_cmp_ge_u32 %s, 14" % sr(st2))
        k("s_cselect_b32 %s, 1, 0" % sr(srb))
        k("s_mul_i32 %s, %s, 14" % (sr(scb), sr(srb)))
        k("s_sub_u32 %s, %s, %s" % (sr(scb), sr(st2), sr(scb)))
    k("s_mul_i32 %s, %s, %d" % (sr(st1), sr(st1), rbx))
    k("s_add_u32 %s, %s, %s" % (sr(srb), sr(srb), sr(st1)))
    k("s_lshl_b32 %s, %s, 2" % (sr(sT), sr(srb)))
    k("s_add_u32 %s, %s, %s" % (sr(sT), sr(sT), sr(sw)))
    if TMW == 2:
        k("s_lshl_b32 %s, %s, 1" % (sr(sT), sr(sT)))
    vW = k.v(); t1 = k.v(); t2 = k.v()
    lpr = pitch // 16
    rpi = 64 // lpr
    sh = int(math.log2(lpr))
    k("v_lshrrev_b32 %s, %d, %s" % (vr(t0), sh, vr(lane)))
    k("v_bfe_u32 %s, %s, 1, %d" % (vr(t1), vr(lane), sh - 1))
    if TN == 64 and kmap == "P":
        k("v_bfe_u32 %s, %s, 1, 2" % (vr(t2), vr(t0)))
    elif TN == 64:
        k("v_bfe_u32 %s, %s, 1, 1" % (vr(t2), vr(t0)))
        k("s_and_b32 %s, %s, 1" % (sr(st1), sr(sw)))
        k("s_lshl_b32 %s, %s, 1" % (sr(st1), sr(st1)))
        k("v_or_b32 %s, %s, %s" % (vr(t2), sr(st1), vr(t2)))
    else:
        k("s_and_b32 %s, %s, 1" % (sr(st1), sr(sw)))
        k("s_lshl_b32 %s, %s, 2" % (sr(st1), sr(st1)))
        k("v_or_b32 %s, %s, %s" % (vr(t2), sr(st1), vr(t0)))
    k("v_xor_b32 %s, %s, %s" % (vr(t1), vr(t1), vr(t2)))
    k("v_lshlrev_b32 %s, 5, %s" % (vr(t1), vr(t1)))
    k("v_and_b32 %s, 1, %s" % (vr(t2), vr(lane)))
    k("v_lshl_or_b32 %s, %s, 4, %s" % (vr(t1), vr(t2), vr(t1)))
    k("v_mul_u32_u24 %s, %d, %s" % (vr(vW), rowb, vr(t0)))
    k("v_add_u32 %s, %s, %s" % (vr(vW), vr(vW), vr(t1)))
    k("s_mul_i32 %s, %s, %d" % (sr(st1), sr(sw), rpi * rowb))
    k("s_mul_i32 %s, %s, %d" % (sr(st2), sr(scb), pitch))
    k("s_add_u32 %s, %s, %s" % (sr(st1), sr(st1), sr(st2)))
    k("v_add_u32 %s, %s, %s" % (vr(vW), sr(st1), vr(vW)))
    sM0 = k.s()
    k("s_lshl_b32 %s, %s, 10" % (sr(sM0), sr(sw)))
    vtok = k.v()
    k("s_lshl_b32 %s, %s, 4" % (sr(st1), sr(sT)))
    k("v_add_u32 %s, %s, %s" % (vr(vtok), sr(st1), vr(cl)))
    vL16 = k.v()
    k("v_lshlrev_b32 %s, 4, %s" % (vr(vL16), vr(lane)))
    if epi == "w2":
        vA = [k.v() for _ in range(4)]
        for c, dl in enumerate((-1, 1, -2, 2)):
            k("v_add_u32 %s, %d, %s" % (vr(t1), dl, vr(vtok)))
            k("v_ashrrev_i32 %s, 4, %s" % (vr(t2), vr(t1)))
            k("v_lshlrev_b32 %s, 14, %s" % (vr(t2), vr(t2)))
            k("v_and_b32 %s, 15, %s" % (vr(t1), vr(t1)))
            k("v_lshl_add_u32 %s, %s, 4, %s" % (vr(t2), vr(t1), vr(t2)))
            k("v_lshl_add_u32 %s, %s, 8, %s" % (vr(t2), vr(g), vr(t2)))
            k("v_add_u32 %s, %d, %s" % (vr(vA[c]), c * 4096, vr(t2)))
    else:
        vA0 = k.v()
        k("s_mul_i32 %s, %s, %d" % (sr(st1), sr(sT), KS * 1024))
        k("v_add_u32 %s, %s, %s" % (vr(vA0), sr(st1), vr(vL16)))
    k("s_waitcnt lgkmcnt(0)")
    sW = k.srd(ptr(cfg["W"]), ptr(cfg["W"]) + 1, K * N * 2)
    sA = k.srd(24, 25, S * K * 2, cfg["act"])
    act = {}
    for i in range(TMW):
        for ks in range(KS):
            act[(i, ks)] = k.a(4)
    soff = k.s(); soff2 = k.s()

    def issue_chunk(c):
        slot = c % R
        for i in range(4):
            k("s_add_u32 m0, %s, 0x%x" % (sr(sM0), slot * 16384 + i * 4096))
            o = (c * CH + i * 4 * rpi) * rowb
            k("s_mov_b32 %s, 0x%x" % (sr(soff), o))
            k.vm("buffer_load_dwordx4 %s, %s, %s offen lds" % (vr(vW), sr(sW, 4), sr(soff)), ("c", c))
        for i in range(TMW):
            if epi != "w2":
                k("s_mov_b32 %s, 0x%x" % (sr(soff2), i * KS * 1024 + c * KSC * 1024))
            for q in range(KSC):
                ks = c * KSC + q
                if epi == "w2":
                    k.vm("buffer_load_dwordx4 %s, %s, %s, 0 offen offset:%d" % (ar(act[(i, ks)], 4), vr(vA[c]), sr(sA, 4), q * 1024), ("c", c))
                else:
                    k.vm("buffer_load_dwordx4 %s, %s, %s, %s offen offset:%d" % (ar(act[(i, ks)], 4), vr(vA0), sr(sA, 4), sr(soff2), q * 1024), ("c", c))

    first = min(NCH, R - 1 if NCH > R else R, 7)
    for c in range(first):
        issue_chunk(c)
    issued = first

    E = {}

    def issue_epi():
        if epi in ("w1", "w2", "w3"):
            sSt = k.srd(24, 25, S * 64, WS_STH if epi != "w3" else WS_STX)
            vS = k.v()
            k("v_lshlrev_b32 %s, 6, %s" % (vr(vS), vr(vtok)))
            E["st"] = []
            for i in range(TMW):
                st = k.v(16)
                E["st"].append(st)
                for q in range(4):
                    k.vm("buffer_load_dwordx4 %s, %s, %s, 0 offen offset:%d" % (vr(st + 4 * q, 4), vr(vS), sr(sSt, 4), i * 1024 + q * 16), "epi")
        if epi == "wo":
            sX = k.srd(ptr(A_X), ptr(A_X) + 1, S * D * 2)
            vX = k.v()
            k("v_lshlrev_b32 %s, 10, %s" % (vr(vX), vr(vtok)))
            k("v_lshl_add_u32 %s, %s, 3, %s" % (vr(vX), vr(g), vr(vX)))
            k("s_lshl_b32 %s, %s, 7" % (sr(st1), sr(scb)))
            E["x"] = k.v(8)
            for t in range(4):
                k.vm("buffer_load_dwordx2 %s, %s, %s, %s offen offset:%d" % (vr(E["x"] + 2 * t, 2), vr(vX), sr(sX, 4), sr(st1), t * 32), "epi")
        if epi in ("w2", "w4"):
            sH = k.srd(24, 25, S * D * 2, WS_H)
            E["h"] = k.v(8)
            for j in range(2):
                k.vm("buffer_load_dwordx4 %s, %s, %s, 0 offen offset:%d" % (vr(E["h"] + 4 * j, 4), vr(E["vP"]), sr(sH, 4), j * 1024), "epi")
        if epi == "w4":
            sX1 = k.srd(24, 25, S * D * 2, WS_X1)
            E["x1"] = k.v(8)
            for j in range(2):
                k.vm("buffer_load_dwordx4 %s, %s, %s, 0 offen offset:%d" % (vr(E["x1"] + 4 * j, 4), vr(E["vP"]), sr(sX1, 4), j * 1024), "epi")

    if N == 512:
        E["vP"] = k.v()
        k("s_lshl_b32 %s, %s, 4" % (sr(st1), sr(sT)))
        k("s_lshl_b32 %s, %s, 1" % (sr(st2), sr(scb)))
        k("s_add_u32 %s, %s, %s" % (sr(st1), sr(st1), sr(st2)))
        k("s_lshl_b32 %s, %s, 10" % (sr(st1), sr(st1)))
        k("v_add_u32 %s, %s, %s" % (vr(E["vP"]), sr(st1), vr(vL16)))
    if issued == NCH:
        issue_epi()

    sxw = k.s()
    if ln:
        k("s_and_b32 %s, %s, %d" % (sr(sxw), sr(sw), NT // 2 - 1))
        k("s_lshl_b32 %s, %s, 1" % (sr(sxw), sr(sxw)))
    else:
        k("s_mov_b32 %s, 0" % sr(sxw))
    nset = 2 if R * 16384 > 65536 else 1
    vT = [[k.v() for _ in range(NT)] for _ in range(nset)]
    k("v_bfe_u32 %s, %s, 2, 2" % (vr(t0), vr(lane)))
    if kmap == "P":
        k("v_lshl_add_u32 %s, %s, 2, %s" % (vr(t1), vr(g), vr(t0)))
        if TN == 64:
            k("v_bfe_u32 %s, %s, 1, 2" % (vr(t2), vr(t1)))
        else:
            k("v_and_b32 %s, 7, %s" % (vr(t2), vr(t1)))
    else:
        k("v_lshl_add_u32 %s, %s, 3, %s" % (vr(t1), vr(g), vr(t0)))
        k("v_lshrrev_b32 %s, 1, %s" % (vr(t2), vr(t0)))
        k("v_and_b32 %s, 1, %s" % (vr(t0), vr(g)))
        k("v_lshl_or_b32 %s, %s, 1, %s" % (vr(t2), vr(t0), vr(t2)))
    k("v_xor_b32 %s, %s, %s" % (vr(t2), sr(sxw), vr(t2)))
    k("v_lshlrev_b32 %s, 5, %s" % (vr(t2), vr(t2)))
    k("v_lshl_or_b32 %s, %s, %d, %s" % (vr(t2), vr(t1), int(math.log2(pitch)), vr(t2)))
    k("v_and_b32 %s, 3, %s" % (vr(t0), vr(lane)))
    k("v_lshl_or_b32 %s, %s, 3, %s" % (vr(vT[0][0]), vr(t0), vr(t2)))
    for t in range(1, NT):
        k("v_xor_b32 %s, %d, %s" % (vr(vT[0][t]), t << 5, vr(vT[0][0])))
    if nset == 2:
        for t in range(NT):
            k("v_add_u32 %s, 0x10000, %s" % (vr(vT[1][t]), vr(vT[0][t])))
    eoff = (16 if kmap == "P" else 4) * pitch
    acc = {(i, t): k.v(4) for i in range(TMW) for t in range(NT)}
    ncs = 2 if ln else 0
    cs = [k.v(4) for _ in range(ncs)]
    if ln:
        ones = k.v(4)
        for q in range(4):
            k("v_mov_b32 %s, 0x%x" % (vr(ones + q), ONES))
    wf = [[k.v(4) for _ in range(4)] for _ in range(2)]
    nh = NT // 4
    steps = [(ks, h) for ks in range(KS) for h in range(nh)]

    def reads(si):
        ks, h = steps[si]
        c = ks // KSC
        base = (c % R) * 16384 + (ks % KSC) * 32 * pitch
        for tt in range(4):
            t = h * 4 + tt
            for e in range(2):
                o = base + e * eoff
                k.lg("ds_read_b64_tr_b16 %s, %s offset:%d" % (vr(wf[si % 2][tt] + 2 * e, 2), vr(vT[o >> 16][t]), o & 0xFFFF), ("r", si))

    def mfmas(si):
        ks, h = steps[si]
        for tt in range(4):
            t = h * 4 + tt
            for i in range(TMW):
                a_ = acc[(i, t)]
                k("%s %s, %s, %s, %s" % (MFMA, vr(a_, 4), vr(wf[si % 2][tt], 4), ar(act[(i, ks)], 4), "0" if ks == 0 else vr(a_, 4)))
            if t < ncs:
                k("%s %s, %s, %s, %s" % (MFMA, vr(cs[t], 4), vr(wf[si % 2][tt], 4), vr(ones, 4), "0" if ks == 0 else vr(cs[t], 4)))

    k.wait_vm(("c", 0))
    k("s_barrier")
    reads(0)
    for si in range(len(steps)):
        if si + 1 < len(steps):
            ks_n, h_n = steps[si + 1]
            if ks_n % KSC == 0 and h_n == 0:
                cn = ks_n // KSC
                k.wait_vm(("c", cn))
                k("s_barrier")
                if issued < NCH and (issued < R or issued - R <= cn - 2):
                    issue_chunk(issued)
                    issued += 1
                    if issued == NCH:
                        issue_epi()
            reads(si + 1)
        k.wait_lg(("r", si))
        mfmas(si)
    assert issued == NCH
    sc = k.s(2); sone = k.s(2)
    k("s_mov_b32 %s, 0x%x" % (sr(sc), f2u(GC1)))
    k("s_mov_b32 %s, 0x%x" % (sr(sc + 1), f2u(GC0)))
    k("s_mov_b32 %s, 1.0" % sr(sone))
    k("s_mov_b32 %s, 1.0" % sr(sone + 1))
    if ln:
        vC = k.v(); vCr = k.v()
        k("v_lshlrev_b32 %s, 4, %s" % (vr(vC), vr(g)))
        k("s_lshl_b32 %s, %s, 6" % (sr(st1), sr(sxw)))
        k("v_add_u32 %s, 0x%x, %s" % (vr(vC), CSOFF, vr(vC)))
        k("v_xor_b32 %s, %s, %s" % (vr(vCr), sr(st1), vr(vC)))
        k("s_mov_b32 exec_lo, 0x00010001")
        k("s_mov_b32 exec_hi, 0x00010001")
        k("s_nop 4")
        k.lg("ds_write_b128 %s, %s" % (vr(vCr), vr(cs[0], 4)), "csw")
        k.lg("ds_write_b128 %s, %s offset:64" % (vr(vCr), vr(cs[1], 4)), "csw")
        k("s_mov_b64 exec, -1")
        k.wait_vm("epi")
        for i in range(TMW):
            stats_finalize(k, E["st"][i], None, epi == "w1")
        k.wait_lg()
        k("s_barrier")
        csr = wf[0][0]
        assert wf[1][3] + 4 - wf[0][0] == 32
        for j in range(NT // 2):
            va = k.v()
            k("v_xor_b32 %s, %d, %s" % (vr(va), j * 128, vr(vCr)))
            k.lg("ds_read_b128 %s, %s" % (vr(csr + 8 * j, 4), vr(va)), "csr")
            k.lg("ds_read_b128 %s, %s offset:64" % (vr(csr + 8 * j + 4, 4), vr(va)), "csr")
        k.wait_lg()
        sO = k.srd(24, 25, S * N * 2, WS_H1 if epi == "w1" else WS_G)
        KSO = N // 32
        vO = k.v()
        k("s_mul_i32 %s, %s, %d" % (sr(st1), sr(sT), KSO))
        k("s_mul_i32 %s, %s, %d" % (sr(st2), sr(scb), TN // 32))
        k("s_add_u32 %s, %s, %s" % (sr(st1), sr(st1), sr(st2)))
        k("s_lshl_b32 %s, %s, 10" % (sr(st1), sr(st1)))
        k("v_add_u32 %s, %s, %s" % (vr(vO), sr(st1), vr(vL16)))
        sj = [k.s() for _ in range(NT // 2)]
        for j in range(NT // 2):
            k("s_lshl_b32 %s, %s, 9" % (sr(st1), sr(sxw)))
            k("s_xor_b32 %s, %s, %d" % (sr(sj[j]), sr(st1), j * 1024))
        tmp = k.v(16)
        for i in range(TMW):
            st = E["st"][i]
            for j2 in range(NT // 4):
                xs = []
                for tt in range(4):
                    t = j2 * 4 + tt
                    for p in range(2):
                        xs.append((acc[(i, t)] + 2 * p, csr + 4 * t + 2 * p))
                for x, c_ in xs:
                    k("v_pk_fma_f32 %s, %s, %s, %s op_sel_hi:[1,0,1]" % (vr(x, 2), vr(c_, 2), vr(st, 2), vr(x, 2)))
                for x, c_ in xs:
                    k("v_pk_mul_f32 %s, %s, %s op_sel_hi:[1,0]" % (vr(x, 2), vr(x, 2), vr(st + 2, 2)))
                gelu_pairs(k, [x for x, _ in xs], [tmp + 2 * q for q in range(8)], sc, sone)
                for q, (x, _) in enumerate(xs):
                    k("v_cvt_pk_bf16_f32 %s, %s, %s" % (vr(tmp + q), vr(x), vr(x + 1)))
                for jj in range(2):
                    j = j2 * 2 + jj
                    if i:
                        k("s_add_u32 %s, %s, 0x%x" % (sr(st1), sr(sj[j]), i * KSO * 1024))
                        so = st1
                    else:
                        so = sj[j]
                    k.vm("buffer_store_dwordx4 %s, %s, %s, %s offen" % (vr(tmp + 4 * jj, 4), vr(vO), sr(sO, 4), sr(so)), "out")
                k("s_nop 1")
    else:
        k("s_nop 7")
        k.wait_vm("epi")
        tmp = k.v(16)
        pk = k.v(8, 4)
        accs = [acc[(0, t)] for t in range(4)]

        def unpack(src, dst):
            for q in range(8):
                k("v_lshlrev_b32 %s, 16, %s" % (vr(dst + 2 * q), vr(src + q)))
                k("v_and_b32 %s, 0xffff0000, %s" % (vr(dst + 2 * q + 1), vr(src + q)))

        def addacc():
            for q in range(8):
                a_ = accs[q // 2] + 2 * (q % 2)
                k("v_pk_add_f32 %s, %s, %s" % (vr(a_, 2), vr(a_, 2), vr(tmp + 2 * q, 2)))

        if epi == "wo":
            unpack(E["x"], tmp)
            addacc()
        elif epi == "w2":
            st = E["st"][0]
            stats_finalize(k, st, None, False)
            unpack(E["h"], tmp)
            for q in range(8):
                k("v_pk_add_f32 %s, %s, %s op_sel_hi:[1,0]" % (vr(tmp + 2 * q, 2), vr(tmp + 2 * q, 2), vr(st, 2)))
            for q in range(8):
                a_ = accs[q // 2] + 2 * (q % 2)
                k("v_pk_fma_f32 %s, %s, %s, %s op_sel_hi:[1,0,1]" % (vr(a_, 2), vr(tmp + 2 * q, 2), vr(st + 2, 2), vr(a_, 2)))
        else:
            unpack(E["x1"], tmp)
            addacc()
            unpack(E["h"], tmp)
            addacc()
        for q in range(8):
            a_ = accs[q // 2] + 2 * (q % 2)
            k("v_cvt_pk_bf16_f32 %s, %s, %s" % (vr(pk + q), vr(a_), vr(a_ + 1)))
        if epi == "w4":
            sO = k.srd(20, 21, S * D * 2)
            vX = k.v()
            k("v_lshlrev_b32 %s, 10, %s" % (vr(vX), vr(vtok)))
            k("v_lshl_add_u32 %s, %s, 3, %s" % (vr(vX), vr(g), vr(vX)))
            k("s_lshl_b32 %s, %s, 7" % (sr(st1), sr(scb)))
            for t in range(4):
                k.vm("buffer_store_dwordx2 %s, %s, %s, %s offen offset:%d" % (vr(pk + 2 * t, 2), vr(vX), sr(sO, 4), sr(st1), t * 32), "out")
        else:
            sO = k.srd(24, 25, S * D * 2, WS_H if epi == "wo" else WS_X1)
            for j in range(2):
                k.vm("buffer_store_dwordx4 %s, %s, %s, 0 offen offset:%d" % (vr(pk + 4 * j, 4), vr(E["vP"]), sr(sO, 4), j * 1024), "out")
            sSo = k.srd(24, 25, S * 64, WS_STH if epi == "wo" else WS_STX)
            vS = k.v()
            k("v_lshlrev_b32 %s, 6, %s" % (vr(vS), vr(vtok)))
            k("v_lshrrev_b32 %s, 5, %s" % (vr(t0), vr(lane)))
            k("v_lshl_add_u32 %s, %s, 2, %s" % (vr(vS), vr(t0), vr(vS)))
            k("s_lshl_b32 %s, %s, 3" % (sr(st1), sr(scb)))
            k("v_add_u32 %s, %s, %s" % (vr(vS), sr(st1), vr(vS)))
            row_stats_store(k, pk, 8, L, sSo, vS)
    k.place(end)
    k("s_endpgm")
    return k


def qkv_kernel(name):
    R = 5
    SLOT = 30720
    XOFF, WOFF = 0, 18432
    STOFF = R * SLOT
    CSOFF = STOFF + 1152
    lds = CSOFF + 384
    QP = 208
    k = Kern(name, 256, lds)
    end = "L_%s_end" % name
    prologue(k, end)
    L = lane_regs(k)
    lane, cl, g, sw, t0 = L["lane"], L["cl"], L["g"], L["w"], L["t"]
    t1 = k.v(); t2 = k.v(); t3 = k.v()
    srb = k.s(); shp = k.s(); st1 = k.s(); st2 = k.s(); sa = k.s(); sb = k.s()
    k("s_and_b32 %s, s2, 7" % sr(st1))
    k("s_lshr_b32 %s, s2, 3" % sr(st2))
    k("s_and_b32 %s, %s, 15" % (sr(shp), sr(st2)))
    k("s_lshr_b32 %s, %s, 4" % (sr(srb), sr(st2)))
    k("s_lshl_b32 %s, %s, 1" % (sr(st1), sr(st1)))
    k("s_add_u32 %s, %s, %s" % (sr(srb), sr(srb), sr(st1)))
    k("s_lshr_b32 %s, %s, 1" % (sr(sa), sr(sw)))
    k("s_and_b32 %s, %s, 1" % (sr(sb), sr(sw)))
    vX = k.v(); vXh = k.v()
    k("v_lshrrev_b32 %s, 3, %s" % (vr(t0), vr(lane)))
    k("v_lshrrev_b32 %s, 4, %s" % (vr(t1), vr(lane)))
    k("s_lshl_b32 %s, %s, 2" % (sr(st1), sr(sb)))
    k("v_or_b32 %s, %s, %s" % (vr(t1), sr(st1), vr(t1)))
    k("v_and_b32 %s, 7, %s" % (vr(t2), vr(lane)))
    k("v_xor_b32 %s, %s, %s" % (vr(t1), vr(t1), vr(t2)))
    k("v_lshlrev_b32 %s, 4, %s" % (vr(t1), vr(t1)))
    k("v_lshl_or_b32 %s, %s, 10, %s" % (vr(t1), vr(t0), vr(t1)))
    k("s_lshl_b32 %s, %s, 17" % (sr(st1), sr(srb)))
    k("s_lshl_b32 %s, %s, 13" % (sr(st2), sr(sw)))
    k("s_add_u32 %s, %s, %s" % (sr(st2), sr(st1), sr(st2)))
    k("v_add_u32 %s, %s, %s" % (vr(vX), sr(st2), vr(t1)))
    k("s_sub_u32 %s, %s, 0x4000" % (sr(st2), sr(st2)))
    k("s_cmp_eq_u32 %s, 0" % sr(srb))
    k("s_cselect_b32 %s, 0x40000000, %s" % (sr(st2), sr(st2)))
    k("v_add_u32 %s, %s, %s" % (vr(vXh), sr(st2), vr(t1)))
    vW = [k.v() for _ in range(3)]
    k("s_mul_i32 %s, %s, %d" % (sr(st1), sr(sw), 16 * 3072))
    k("s_lshl_b32 %s, %s, 6" % (sr(st2), sr(shp)))
    k("s_add_u32 %s, %s, %s" % (sr(st1), sr(st1), sr(st2)))
    for j in range(3):
        k("v_add_u32 %s, %d, %s" % (vr(t0), 64 * j, vr(lane)))
        k("v_mul_u32_u24 %s, 5462, %s" % (vr(t1), vr(t0)))
        k("v_lshrrev_b32 %s, 16, %s" % (vr(t1), vr(t1)))
        k("v_mul_u32_u24 %s, 12, %s" % (vr(t2), vr(t1)))
        k("v_sub_u32 %s, %s, %s" % (vr(t0), vr(t0), vr(t2)))
        k("v_lshrrev_b32 %s, 3, %s" % (vr(t2), vr(t1)))
        k("v_lshlrev_b32 %s, 1, %s" % (vr(t2), vr(t2)))
        k("v_xor_b32 %s, %s, %s" % (vr(t0), vr(t0), vr(t2)))
        k("v_lshrrev_b32 %s, 2, %s" % (vr(t2), vr(t0)))
        k("v_and_b32 %s, 3, %s" % (vr(t0), vr(t0)))
        k("v_lshlrev_b32 %s, 4, %s" % (vr(t0), vr(t0)))
        k("v_lshl_or_b32 %s, %s, 10, %s" % (vr(t0), vr(t2), vr(t0)))
        k("v_mul_u32_u24 %s, 3072, %s" % (vr(t1), vr(t1)))
        k("v_add3_u32 %s, %s, %s, %s" % (vr(vW[j]), vr(t0), vr(t1), sr(st1)))
    sMx = k.s(); sMw = k.s()
    k("s_lshl_b32 %s, %s, 10" % (sr(sMx), sr(sw)))
    k("s_mul_i32 %s, %s, 3072" % (sr(sMw), sr(sw)))
    k("s_waitcnt lgkmcnt(0)")
    sX = k.srd(ptr(A_X), ptr(A_X) + 1, S * D * 2)
    sW = k.srd(ptr(A_WQKV), ptr(A_WQKV) + 1, D * 1536 * 2)
    soff = k.s()

    def issue_chunk(c):
        base = (c % R) * SLOT
        skip = k.label("nohalo")
        k("s_cmp_ge_u32 %s, 2" % sr(sw))
        k("s_cbranch_scc1 %s" % skip)
        k("s_add_u32 m0, %s, 0x%x" % (sr(sMx), base + XOFF))
        k("s_mov_b32 %s, 0x%x" % (sr(soff), c * 128))
        k.vm("buffer_load_dwordx4 %s, %s, %s offen lds" % (vr(vXh), sr(sX, 4), sr(soff)), ("c", c), counted=False)
        k.place(skip)
        for j in range(3):
            k("s_add_u32 m0, %s, 0x%x" % (sr(sMw), base + WOFF + j * 1024))
            k("s_mov_b32 %s, 0x%x" % (sr(soff), c * 64 * 3072))
            k.vm("buffer_load_dwordx4 %s, %s, %s offen lds" % (vr(vW[j]), sr(sW, 4), sr(soff)), ("c", c))
        for i in range(4):
            k("s_add_u32 m0, %s, 0x%x" % (sr(sMx), base + XOFF + 2048 + i * 4096))
            k("s_mov_b32 %s, 0x%x" % (sr(soff), c * 128 + i * 32768))
            k.vm("buffer_load_dwordx4 %s, %s, %s offen lds" % (vr(vX), sr(sX, 4), sr(soff)), ("c", c))

    NCH = 8
    first = R - 1
    for c in range(R):
        issue_chunk(c)
    issued = R
    k("v_lshrrev_b32 %s, 1, %s" % (vr(t0), vr(cl)))
    k("v_xor_b32 %s, %s, %s" % (vr(t0), vr(t0), vr(g)))
    k("v_lshlrev_b32 %s, 4, %s" % (vr(t0), vr(t0)))
    k("v_lshl_or_b32 %s, %s, 7, %s" % (vr(t0), vr(cl), vr(t0)))
    k("v_xor_b32 %s, 64, %s" % (vr(t1), vr(t0)))
    k("s_lshl_b32 %s, %s, 13" % (sr(st1), sr(sa)))
    k("s_lshl_b32 %s, %s, 12" % (sr(st2), sr(sb)))
    k("s_add_u32 %s, %s, %s" % (sr(st1), sr(st1), sr(st2)))
    k("s_add_u32 %s, %s, 2048" % (sr(st1), sr(st1)))
    sB = k.s()
    k("s_add_u32 %s, %s, 4096" % (sr(sB), sr(st1)))
    k("s_lshl_b32 %s, %s, 13" % (sr(st2), sr(sb)))
    k("s_sub_u32 %s, %s, %s" % (sr(sB), sr(sB), sr(st2)))
    NW = 3
    vXA = [[k.v() for _ in range(2)] for _ in range(NW)]
    vXB = [[k.v() for _ in range(2)] for _ in range(NW)]
    vXH = [[k.v() for _ in range(2)] for _ in range(NW)]
    for par, src in ((0, t0), (1, t1)):
        k("v_add_u32 %s, %s, %s" % (vr(vXA[0][par]), sr(st1), vr(src)))
        k("v_add_u32 %s, %s, %s" % (vr(vXB[0][par]), sr(sB), vr(src)))
        k("v_mov_b32 %s, %s" % (vr(vXH[0][par]), vr(src)))
        for wn in range(1, NW):
            for arr in (vXA, vXB, vXH):
                k("v_add_u32 %s, 0x%x, %s" % (vr(arr[wn][par]), wn * 2 * SLOT, vr(arr[0][par])))
    vT = [k.v() for _ in range(NW)]
    k("v_bfe_u32 %s, %s, 2, 2" % (vr(t0), vr(lane)))
    k("v_lshl_add_u32 %s, %s, 3, %s" % (vr(t0), vr(g), vr(t0)))
    k("v_mul_u32_u24 %s, 192, %s" % (vr(t0), vr(t0)))
    k("v_and_b32 %s, 1, %s" % (vr(t1), vr(g)))
    k("v_xor_b32 %s, %s, %s" % (vr(t1), sr(sb), vr(t1)))
    k("v_lshl_add_u32 %s, %s, 5, %s" % (vr(t0), vr(t1), vr(t0)))
    k("v_and_b32 %s, 3, %s" % (vr(t1), vr(lane)))
    k("v_lshl_add_u32 %s, %s, 3, %s" % (vr(vT[0]), vr(t1), vr(t0)))
    for wn in range(1, NW):
        k("v_add_u32 %s, 0x%x, %s" % (vr(vT[wn]), wn * 2 * SLOT, vr(vT[0])))
    acc = {(i, wh): k.v(4) for i in range(4) for wh in range(3)}
    ex = [k.v(4) for _ in range(3)]
    ssum = [k.v(4) for _ in range(3)]
    ssq = [k.v(4) for _ in range(3)]
    ones = k.v(4)
    wf = [[k.v(4) for _ in range(3)] for _ in range(2)]
    xf = [[k.v(4) for _ in range(5)] for _ in range(2)]
    for q in range(4):
        k("v_mov_b32 %s, 0x%x" % (vr(ones + q), ONES))
        k("v_mov_b32 %s, 0x%x" % (vr(xf[0][4] + q), ONES))
        k("v_mov_b32 %s, 0x%x" % (vr(xf[1][4] + q), ONES))
    sEm = k.s(2)
    k("s_cmp_eq_u32 %s, 0" % sr(sa))
    k("s_cselect_b64 %s, -1, 0" % sr(sEm, 2))

    def reads(ks):
        c = ks // 2; par = ks % 2
        slot = c % R
        wn = slot // 2
        base = (slot % 2) * SLOT
        b_ = ks % 2
        k("s_mov_b64 exec, %s" % sr(sEm, 2))
        k("ds_read_b128 %s, %s offset:%d" % (vr(xf[b_][4], 4), vr(vXH[wn][par]), base + XOFF))
        k("s_mov_b64 exec, -1")
        for wh in range(3):
            for e in range(2):
                o = base + WOFF + par * 32 * 192 + e * 4 * 192 + wh * 64
                k.lg("ds_read_b64_tr_b16 %s, %s offset:%d" % (vr(wf[b_][wh] + 2 * e, 2), vr(vT[wn]), o), ("r", ks))
        for i in range(4):
            va = (vXA if i < 2 else vXB)[wn][par]
            k.lg("ds_read_b128 %s, %s offset:%d" % (vr(xf[b_][i], 4), vr(va), base + XOFF + (i % 2) * 2048), ("r", ks))

    def mf(d, a_, b_, ks):
        k("%s %s, %s, %s, %s" % (MFMA, vr(d, 4), vr(a_, 4), vr(b_, 4), "0" if ks == 0 else vr(d, 4)))

    def mfmas(ks):
        b_ = ks % 2
        for i in range(4):
            for wh in range(3):
                mf(acc[(i, wh)], wf[b_][wh], xf[b_][i], ks)
        for wh in range(3):
            mf(ex[wh], wf[b_][wh], xf[b_][4], ks)
        for n, i in enumerate((0, 1, 4)):
            mf(ssum[n], ones, xf[b_][i], ks)
            mf(ssq[n], xf[b_][i], xf[b_][i], ks)

    k.wait_vm(("c", 0))
    k("s_barrier")
    reads(0)
    for ks in range(16):
        if ks + 1 < 16:
            if (ks + 1) % 2 == 0:
                cn = (ks + 1) // 2
                k.wait_vm(("c", cn))
                k("s_barrier")
                if issued < NCH and issued - R <= cn - 2:
                    issue_chunk(issued)
                    issued += 1
            reads(ks + 1)
        k.wait_lg(("r", ks))
        mfmas(ks)
    assert issued == NCH
    sm = [k.s(2) for _ in range(3)]
    sdiag = k.s(2)
    k("v_and_b32 %s, 3, %s" % (vr(t0), vr(cl)))
    for q in range(3):
        k("v_cmp_eq_u32 %s, %d, %s" % (sr(sm[q], 2), q + 1, vr(t0)))
    k("v_lshrrev_b32 %s, 2, %s" % (vr(t1), vr(cl)))
    k("v_cmp_eq_u32 %s, %s, %s" % (sr(sdiag, 2), vr(t1), vr(g)))
    vSA = k.v(); vSB = k.v(); vSH = k.v()
    k("v_lshlrev_b32 %s, 3, %s" % (vr(vSH), vr(cl)))
    k("v_add_u32 %s, 0x%x, %s" % (vr(vSH), STOFF, vr(vSH)))
    k("s_lshr_b32 %s, %s, 4" % (sr(st2), sr(st1)))
    k("v_add_u32 %s, %s, %s" % (vr(vSA), sr(st2), vr(vSH)))
    k("s_lshr_b32 %s, %s, 4" % (sr(st2), sr(sB)))
    k("v_add_u32 %s, %s, %s" % (vr(vSB), sr(st2), vr(vSH)))
    k("s_nop 3")
    res = [k.v(2) for _ in range(3)]
    tq = k.v(); tr1 = k.v()
    for n in range(3):
        q_ = ssq[n]
        for q in range(3):
            k("v_cndmask_b32 %s, %s, %s, %s" % (vr(q_), vr(q_), vr(q_ + q + 1), sr(sm[q], 2)))
        finalize_sq(k, ssum[n], q_, res[n] + 1, res[n], tr1, tq, False)
        k("v_mul_f32 %s, %s, %s" % (vr(res[n] + 1), vr(res[n] + 1), vr(res[n])))
    k("s_mov_b64 exec, %s" % sr(sdiag, 2))
    k.lg("ds_write_b64 %s, %s" % (vr(vSA), vr(res[0], 2)), "sw")
    k.lg("ds_write_b64 %s, %s offset:128" % (vr(vSA), vr(res[1], 2)), "sw")
    k("s_and_b64 exec, %s, %s" % (sr(sdiag, 2), sr(sEm, 2)))
    k.lg("ds_write_b64 %s, %s" % (vr(vSH), vr(res[2], 2)), "sw")
    vC = k.v()
    k("s_mov_b64 exec, -1")
    k("v_lshlrev_b32 %s, 4, %s" % (vr(vC), vr(g)))
    k("s_lshl_b32 %s, %s, 6" % (sr(st2), sr(sb)))
    k("s_add_u32 %s, %s, 0x%x" % (sr(st2), sr(st2), CSOFF))
    k("v_add_u32 %s, %s, %s" % (vr(vC), sr(st2), vr(vC)))
    smk = k.s(2)
    k("s_mov_b32 %s, 0x00010001" % sr(smk))
    k("s_mov_b32 %s, 0x00010001" % sr(smk + 1))
    k("s_andn2_b64 exec, %s, %s" % (sr(smk, 2), sr(sEm, 2)))
    for wh in range(3):
        k.lg("ds_write_b128 %s, %s offset:%d" % (vr(vC), vr(ex[wh], 4), wh * 128), "sw")
    k("s_mov_b64 exec, -1")
    k.wait_lg()
    k("s_barrier")
    stt = [xf[0][i] for i in range(5)]
    csr = [wf[0][wh] for wh in range(3)]
    for i in range(4):
        k.lg("ds_read_b64 %s, %s offset:%d" % (vr(stt[i], 2), vr(vSA if i < 2 else vSB), (i % 2) * 128), "sr")
    k.lg("ds_read_b64 %s, %s" % (vr(stt[4], 2), vr(vSH)), "sr")
    for wh in range(3):
        k.lg("ds_read_b128 %s, %s offset:%d" % (vr(csr[wh], 4), vr(vC), wh * 128), "sr")
    vQA = k.v(); vQB = k.v(); vQH = k.v()
    k("v_mul_u32_u24 %s, %d, %s" % (vr(vQH), QP, vr(cl)))
    k("v_lshl_add_u32 %s, %s, 3, %s" % (vr(vQH), vr(g), vr(vQH)))
    k("s_lshl_b32 %s, %s, 5" % (sr(st2), sr(sb)))
    k("v_add_u32 %s, %s, %s" % (vr(vQH), sr(st2), vr(vQH)))
    k("s_lshr_b32 %s, %s, 11" % (sr(st2), sr(st1)))
    k("s_mul_i32 %s, %s, %d" % (sr(st2), sr(st2), 16 * QP))
    k("v_add_u32 %s, %s, %s" % (vr(vQA), sr(st2), vr(vQH)))
    k("s_lshr_b32 %s, %s, 11" % (sr(st2), sr(sB)))
    k("s_mul_i32 %s, %s, %d" % (sr(st2), sr(st2), 16 * QP))
    k("v_add_u32 %s, %s, %s" % (vr(vQB), sr(st2), vr(vQH)))
    k.wait_lg()

    def fix(a_, st, c_, va, off):
        for p in range(2):
            k("v_pk_mul_f32 %s, %s, %s op_sel_hi:[1,0]" % (vr(a_ + 2 * p, 2), vr(a_ + 2 * p, 2), vr(st, 2)))
        for p in range(2):
            k("v_pk_fma_f32 %s, %s, %s, %s op_sel:[0,1,0] op_sel_hi:[1,1,1]" % (vr(a_ + 2 * p, 2), vr(c_ + 2 * p, 2), vr(st, 2), vr(a_ + 2 * p, 2)))
        k("v_cvt_pk_bf16_f32 %s, %s, %s" % (vr(a_), vr(a_), vr(a_ + 1)))
        k("v_cvt_pk_bf16_f32 %s, %s, %s" % (vr(a_ + 1), vr(a_ + 2), vr(a_ + 3)))
        k.lg("ds_write_b64 %s, %s offset:%d" % (vr(va), vr(a_, 2), off), "qw")

    for i in range(4):
        for wh in range(3):
            fix(acc[(i, wh)], stt[i], csr[wh], vQA if i < 2 else vQB, (i % 2) * 16 * QP + wh * 64)
    k("s_mov_b64 exec, %s" % sr(sEm, 2))
    for wh in (1, 2):
        fix(ex[wh], stt[4], csr[wh], vQH, wh * 64)
    k("s_mov_b64 exec, -1")
    k.wait_lg()
    k("s_barrier")
    k.vnext = 16
    vR = k.v(); vtok = k.v()
    k("s_lshl_b32 %s, %s, 6" % (sr(st2), sr(sa)))
    k("v_add_u32 %s, %s, %s" % (vr(vtok), sr(st2), vr(lane)))
    k("v_mul_u32_u24 %s, %d, %s" % (vr(vR), QP, vr(vtok)))
    k("s_lshl_b32 %s, %s, 5" % (sr(st2), sr(sb)))
    k("s_add_u32 %s, %s, %d" % (sr(st2), sr(st2), 2 * QP))
    k("v_add_u32 %s, %s, %s" % (vr(vR), sr(st2), vr(vR)))
    q = k.v(8, 4)
    kk = [k.v(8, 4) for _ in range(8)]
    vv = [k.v(8, 4) for _ in range(8)]
    for h in range(2):
        k.lg("ds_read_b128 %s, %s offset:%d" % (vr(q + 4 * h, 4), vr(vR), 14 * QP + 16 * h), "q")
    for w_ in range(8):
        for h in range(2):
            k.lg("ds_read_b128 %s, %s offset:%d" % (vr(kk[w_] + 4 * h, 4), vr(vR), (14 - 2 * w_) * QP + 64 + 16 * h), ("k", w_))
    lg_ = k.v(8, 2)
    for w_ in range(8):
        k("v_mov_b32 %s, 0" % vr(lg_ + w_))
    k("s_lshl_b32 %s, %s, 7" % (sr(st2), sr(srb)))
    k("v_add_u32 %s, %s, %s" % (vr(vtok), sr(st2), vr(vtok)))
    for half in range(2):
        k.wait_lg(("k", half * 4 + 3))
        for w_ in range(half * 4, half * 4 + 4):
            for h in range(2):
                k.lg("ds_read_b128 %s, %s offset:%d" % (vr(vv[w_] + 4 * h, 4), vr(vR), (14 - 2 * w_) * QP + 128 + 16 * h), ("v", w_))
        for j in range(8):
            for w_ in range(half * 4, half * 4 + 4):
                k("v_dot2c_f32_bf16 %s, %s, %s" % (vr(lg_ + w_), vr(q + j), vr(kk[w_] + j)))
    k("s_nop 2")
    nomask = k.label("nomask")
    k("s_cmp_lg_u32 %s, 0" % sr(srb))
    k("s_cbranch_scc1 %s" % nomask)
    neg = k.v()
    k("v_mov_b32 %s, 0x%x" % (vr(neg), f2u(-4e9)))
    for w_ in range(1, 8):
        k("v_cmp_le_u32 vcc, %d, %s" % (2 * w_, vr(vtok)))
        k("s_nop 1")
        k("v_cndmask_b32 %s, %s, %s, vcc" % (vr(lg_ + w_), vr(neg), vr(lg_ + w_)))
    k.place(nomask)
    mx = k.v(); ssum_ = k.v()
    k("v_max3_f32 %s, %s, %s, %s" % (vr(mx), vr(lg_), vr(lg_ + 1), vr(lg_ + 2)))
    k("v_max3_f32 %s, %s, %s, %s" % (vr(ssum_), vr(lg_ + 3), vr(lg_ + 4), vr(lg_ + 5)))
    k("v_max3_f32 %s, %s, %s, %s" % (vr(mx), vr(mx), vr(lg_ + 6), vr(lg_ + 7)))
    k("v_max_f32 %s, %s, %s" % (vr(mx), vr(mx), vr(ssum_)))
    ssc = k.s()
    k("s_mov_b32 %s, 0x%x" % (sr(ssc), f2u(0.25 * LOG2E)))
    for w_ in range(8):
        k("v_sub_f32 %s, %s, %s" % (vr(lg_ + w_), vr(lg_ + w_), vr(mx)))
    for w_ in range(8):
        k("v_mul_f32 %s, %s, %s" % (vr(lg_ + w_), sr(ssc), vr(lg_ + w_)))
    for w_ in range(8):
        k("v_exp_f32 %s, %s" % (vr(lg_ + w_), vr(lg_ + w_)))
    k("s_nop 0")
    tt = k.v(4, 2)
    k("v_pk_add_f32 %s, %s, %s" % (vr(tt, 2), vr(lg_, 2), vr(lg_ + 2, 2)))
    k("v_pk_add_f32 %s, %s, %s" % (vr(tt + 2, 2), vr(lg_ + 4, 2), vr(lg_ + 6, 2)))
    k("v_pk_add_f32 %s, %s, %s" % (vr(tt, 2), vr(tt, 2), vr(tt + 2, 2)))
    k("v_add_f32 %s, %s, %s" % (vr(tt), vr(tt), vr(tt + 1)))
    k("v_rcp_f32 %s, %s" % (vr(tt), vr(tt)))
    k("s_nop 0")
    for j in range(4):
        k("v_pk_mul_f32 %s, %s, %s op_sel_hi:[1,0]" % (vr(lg_ + 2 * j, 2), vr(lg_ + 2 * j, 2), vr(tt, 2)))
    p2 = k.v(4)
    for j in range(4):
        k("v_cvt_pk_bf16_f32 %s, %s, %s" % (vr(p2 + j), vr(lg_ + 2 * j), vr(lg_ + 2 * j + 1)))
    o = k.v(16, 4)
    for j in range(16):
        k("v_mov_b32 %s, 0" % vr(o + j))
    slo = k.s(); shi = k.s()
    k("s_mov_b32 %s, 0x05040100" % sr(slo))
    k("s_mov_b32 %s, 0x07060302" % sr(shi))
    tp = kk[0]
    for j in range(4):
        k.wait_lg(("v", 2 * j + 1))
        for i in range(8):
            k("v_perm_b32 %s, %s, %s, %s" % (vr(tp + 2 * i), vr(vv[2 * j + 1] + i), vr(vv[2 * j] + i), sr(slo)))
            k("v_perm_b32 %s, %s, %s, %s" % (vr(tp + 2 * i + 1), vr(vv[2 * j + 1] + i), vr(vv[2 * j] + i), sr(shi)))
        for i in range(16):
            k("v_dot2c_f32_bf16 %s, %s, %s" % (vr(o + i), vr(tp + i), vr(p2 + j)))
    k("s_nop 2")
    for i in range(8):
        k("v_cvt_pk_bf16_f32 %s, %s, %s" % (vr(q + i), vr(o + 2 * i), vr(o + 2 * i + 1)))
    sO = k.srd(24, 25, S * D * 2, WS_O)
    k("v_lshrrev_b32 %s, 4, %s" % (vr(t0), vr(vtok)))
    k("v_lshlrev_b32 %s, 14, %s" % (vr(t0), vr(t0)))
    k("v_lshl_add_u32 %s, %s, 4, %s" % (vr(t0), vr(cl), vr(t0)))
    k("s_lshl_b32 %s, %s, 10" % (sr(st1), sr(shp)))
    k("s_lshl_b32 %s, %s, 9" % (sr(st2), sr(sb)))
    k("s_add_u32 %s, %s, %s" % (sr(st1), sr(st1), sr(st2)))
    for j in range(2):
        k.vm("buffer_store_dwordx4 %s, %s, %s, %s offen offset:%d" % (vr(q + 4 * j, 4), vr(t0), sr(sO, 4), sr(st1), j * 256), "out")
    k.place(end)
    k("s_endpgm")
    return k


def build(extra_empty=0):
    ks = [qkv_kernel("qkv_kernel")] + [gemm_kernel(e + "_kernel", e) for e in ("wo", "w1", "w2", "w3", "w4")]
    hdr = open("cdna_kernels/%s.s.ref" % NAME).read().split("; Override launch")[0]
    out = [hdr.rstrip()]
    for k in ks:
        out.append("; @launch kernel=%s grid=(%d,1,1) block=(%d,1,1) lds=%d" % (k.name, k.nwg, k.nthreads, k.lds))
    for i in range(extra_empty):
        out.append("; @launch kernel=empty_kernel grid=(256,1,1) block=(256,1,1) lds=0")
    out.append('.amdgcn_target "amdgcn-amd-amdhsa--gfx950"')
    out.append(".text")
    if extra_empty:
        e = Kern("empty_kernel", 256, 0)
        e("s_endpgm")
        ks = ks + [e]
    for k in ks:
        out.append(k.text())
    out.append('.section .rodata,"a"')
    for k in ks:
        out.append(k.descriptor())
    return "\n".join(out)


if __name__ == "__main__":
    extra = int(sys.argv[2]) if len(sys.argv) > 2 else 0
    path = sys.argv[1] if len(sys.argv) > 1 else "cdna_kernels/%s.s" % NAME
    open(path, "w").write(build(extra))
    print("wrote", path)
```
